```python
import torch

def _softmax(x, axis=-1):
    return torch.softmax(x, dim=axis)
def _gelu(x):
    return torch.nn.functional.gelu(x, approximate="tanh")
def _silu(x):
    return torch.nn.functional.silu(x)
def _sigmoid(x):
    return torch.sigmoid(x)
def _layernorm(x, axis=-1, eps=1e-5):
    m = x.mean(dim=axis, keepdim=True)
    v = x.var(dim=axis, keepdim=True, unbiased=False)
    return (x - m) / torch.sqrt(v + eps)
def _scatter_add(tgt, idx, src, axis=0):
    return tgt.clone().index_add_(axis, idx, src)
def _segment_sum(src, seg, n):
    out = torch.zeros((n,) + src.shape[1:], dtype=src.dtype)
    return out.index_add_(0, seg, src)
def _pad(x, pw):
    flat = tuple(v for pair in reversed(pw) for v in pair)
    return torch.nn.functional.pad(x, flat)

kernel_name = 'standalone__mha_softmax__near_ridge'

def setup_inputs():

    _w = (lambda a: (lambda t: t.to(torch.bfloat16) if t.is_floating_point() else t)(torch.as_tensor(a)))
    B, H, Sq, Sk, D = 8, 32, 736, 512, 128
    return {
        "q": _w((lambda *s: torch.randn(*s, dtype=torch.bfloat16) * 0.8)(B, H, Sq, D)),
        "k": _w((lambda *s: torch.randn(*s, dtype=torch.bfloat16) * 0.8)(B, H, Sk, D)),
        "v": _w((lambda *s: torch.randn(*s, dtype=torch.bfloat16) * 0.05)(B, H, Sk, D)),
    }

def reference(q, k, v):
    scale = q.shape[-1] ** -0.5
    scores = torch.einsum("bhqd,bhkd->bhqk", q, k) * scale
    p = _softmax(scores, axis=-1)
    return torch.einsum("bhqk,bhkd->bhqd", p, v)
```

```python
import re

REG_RE = re.compile(r'^-?\|?([vas])(\d+)\|?$|^-?([vas])\[(\d+):(\d+)\]$')

def regs_of(tok):
    tok = tok.strip()
    if tok in ('vcc', 'exec', 'm0', 'scc'):
        return [tok]
    m = REG_RE.match(tok)
    if not m:
        return []
    if m.group(1):
        return [m.group(1) + m.group(2)]
    return [m.group(3) + str(i) for i in range(int(m.group(4)), int(m.group(5)) + 1)]

TRANS = ('v_exp_f32', 'v_rcp_f32', 'v_log_f32', 'v_rsq_f32', 'v_sqrt_f32')

class I:
    def __init__(self, text, tag=None, comment=None):
        self.text = text.strip()
        self.tag = tag
        self.comment = comment
        self.pre_lgkm = None
        self.pre_vm = None
        self.pre_nop = 0
        self.rd = []; self.wr = []; self.rd_ab = []; self.rd_c = []
        self.kind = None
        self.parse()

    def parse(self):
        t = self.text
        if t.endswith(':') or t.startswith('.') or t.startswith(';'):
            self.kind = 'label'; return
        parts = t.split(None, 1)
        op = parts[0]; self.op = op
        rest = parts[1] if len(parts) > 1 else ''
        ops = [x.strip() for x in rest.split(',')] if rest else []
        if ops:
            ops[-1] = ops[-1].split()[0] if ops[-1] else ops[-1]
        R = [regs_of(x) for x in ops]
        flat = lambda L: [r for x in L for r in x]
        if op == 'WAIT':
            self.kind = 'wait'; return
        if op.startswith('v_mfma'):
            self.kind = 'mfma'
            self.wr = R[0]; self.rd_ab = R[1] + R[2]; self.rd_c = R[3]
            self.rd = self.rd_ab + self.rd_c
        elif op.startswith('v_cmp'):
            self.kind = 'valu'; self.wr = R[0]; self.rd = flat(R[1:])
        elif op.startswith('v_permlane') and 'swap' in op:
            self.kind = 'valu'; self.wr = R[0] + R[1]; self.rd = R[0] + R[1]; self.perm = True
        elif op.startswith('v_readfirstlane') or op.startswith('v_readlane'):
            self.kind = 'valu'; self.wr = R[0]; self.rd = flat(R[1:]); self.rdlane = True
        elif op.startswith('v_'):
            self.kind = 'trans' if op.replace('_e32', '').replace('_e64', '') in TRANS else 'valu'
            self.wr = R[0]; self.rd = flat(R[1:])
            if op.startswith('v_fmac') : self.rd += R[0]
            if op.startswith('v_cndmask') and len(ops) == 3: self.rd += ['vcc']
        elif op.startswith('ds_read'):
            self.kind = 'ldsr'; self.wr = R[0]; self.rd = R[1]
        elif op.startswith('ds_write'):
            self.kind = 'ldsw'; self.rd = flat(R)
        elif op.startswith('buffer_load') and t.split()[-1] == 'lds':
            self.kind = 'dma'; self.rd = flat(R) + ['m0']
        elif op.startswith('buffer_load') or op.startswith('global_load'):
            self.kind = 'vld'; self.wr = R[0]; self.rd = flat(R[1:])
        elif op.startswith('buffer_store'):
            self.kind = 'vst'; self.rd = flat(R); self.data = R[0]
        elif op in ('s_waitcnt',):
            self.kind = 'swait'
        elif op == 's_nop':
            self.kind = 'nop'; self.n = int(ops[0], 0) + 1
        elif op in ('s_barrier', 's_endpgm', 's_setprio', 's_sleep'):
            self.kind = 'salu'
        elif op.startswith('s_cbranch') or op == 's_branch':
            self.kind = 'branch'
            if 'scc' in op: self.rd = ['scc']
            if 'vcc' in op: self.rd = ['vcc']
        elif op.startswith('s_cmp') or op.startswith('s_bitcmp'):
            self.kind = 'salu'; self.rd = flat(R); self.wr = ['scc']
        elif op.startswith('s_load') or op.startswith('s_memtime') or op.startswith('s_memrealtime'):
            self.kind = 'smem'; self.wr = R[0]; self.rd = flat(R[1:])
        elif op.startswith('s_'):
            self.kind = 'salu'; self.wr = R[0]; self.rd = flat(R[1:])
            if op.startswith('s_cselect') or op.startswith('s_addc') or op.startswith('s_subb'): self.rd += ['scc']
            if op.startswith('s_bitset'): self.rd += R[0]
        else:
            raise ValueError("unknown instruction: " + t)

    def is_valu(self):
        return self.kind in ('valu', 'trans')

def WAIT(lgkm=None, vm=None):
    w = I('WAIT')
    w.w_lgkm = lgkm; w.w_vm = vm
    w.r_lgkm = None; w.r_vm = None
    return w

def _mn(a, b):
    return b if a is None else min(a, b)

def resolve_waits(trace, verbose=False):
    lg = []
    vm = []
    for ins in trace:
        k = ins.kind
        if k == 'label': continue
        if k == 'wait':
            if ins.w_lgkm is not None:
                if ins.w_lgkm == 0: n = 0
                else:
                    idx = [j for j, o in enumerate(lg) if ins.w_lgkm(o.tag)]
                    n = len(lg) - 1 - idx[-1] if idx else None
                if n is not None:
                    n = min(n, 15)
                    ins.r_lgkm = _mn(ins.r_lgkm, n)
                    lg = lg[len(lg) - n:] if n else []
            if ins.w_vm is not None:
                if ins.w_vm == 0: n = 0
                else:
                    idx = [j for j, o in enumerate(vm) if ins.w_vm(o.tag)]
                    n = len(vm) - 1 - idx[-1] if idx else None
                if n is not None:
                    n = min(n, 63)
                    ins.r_vm = _mn(ins.r_vm, n)
                    vm = vm[len(vm) - n:] if n else []
            continue
        if k == 'swait':
            m = re.search(r'lgkmcnt\((\d+)\)', ins.text)
            if m:
                n = int(m.group(1)); lg = lg[len(lg) - n:] if 0 < n < len(lg) else ([] if n == 0 else lg)
            m = re.search(r'vmcnt\((\d+)\)', ins.text)
            if m:
                n = int(m.group(1)); vm = vm[len(vm) - n:] if 0 < n < len(vm) else ([] if n == 0 else vm)
            continue
        touched = set(ins.rd) | set(ins.wr)
        idx = [j for j, o in enumerate(lg) if o.kind == 'ldsr' and touched & set(o.wr)]
        if idx and not (k == 'ldsr' and not (set(ins.rd) & set(r for j in idx for r in lg[j].wr))):
            n = min(len(lg) - 1 - idx[-1], 15)
            ins.pre_lgkm = _mn(ins.pre_lgkm, n)
            lg = lg[len(lg) - n:] if n else []
        idx = [j for j, o in enumerate(vm) if o.kind == 'vld' and touched & set(o.wr)]
        if idx:
            n = min(len(vm) - 1 - idx[-1], 63)
            ins.pre_vm = _mn(ins.pre_vm, n)
            vm = vm[len(vm) - n:] if n else []
        if k in ('ldsr', 'ldsw'): lg.append(ins)
        if k in ('dma', 'vld', 'vst'): vm.append(ins)

def states_of(ins):
    if ins.kind == 'label': return 0
    if ins.kind == 'wait':
        return 1 if (ins.r_lgkm is not None or ins.r_vm is not None) else 0
    n = ins.n if ins.kind == 'nop' else 1
    return n

def prefix_states(ins):
    n = ins.pre_nop
    if ins.pre_lgkm is not None or ins.pre_vm is not None: n += 1
    return n

def need_between(p, c):
    need = 0
    pw = set(p.wr)
    if p.is_valu():
        vg = set(r for r in pw if r[0] in 'va' and r != 'vcc')
        sg = pw - vg
        if c.kind == 'mfma' and vg & set(c.rd): need = max(need, 2)
        if getattr(c, 'perm', False) and vg & set(c.rd): need = max(need, 2)
        if getattr(c, 'rdlane', False) and vg & set(c.rd): need = max(need, 1)
        if p.kind == 'trans' and c.kind == 'valu' and vg & set(c.rd): need = max(need, 1)
        if p.kind == 'trans' and c.kind in ('ldsw', 'vst', 'ldsr', 'dma', 'vld') and vg & set(c.rd): need = max(need, 1)
        if sg:
            if c.is_valu() and sg & set(c.rd): need = max(need, 2)
            if c.kind in ('dma', 'vld', 'vst') and sg & set(c.rd): need = max(need, 5)
            if c.kind in ('salu', 'branch') and sg & set(c.rd): need = max(need, 1)
    if p.kind == 'mfma':
        if c.kind == 'mfma':
            if pw & set(c.rd_ab): need = max(need, 12)
            if pw & set(c.rd_c):
                if c.rd_c != p.wr: need = max(need, 10)
            elif pw & set(c.wr) and c.wr != p.wr: need = max(need, 10)
        elif c.is_valu():
            if pw & (set(c.rd) | set(c.wr)): need = max(need, 12)
            if set(p.rd_c) & set(c.wr): need = max(need, 7)
        elif c.kind in ('ldsr', 'ldsw', 'vld', 'vst', 'dma'):
            if pw & (set(c.rd) | set(c.wr)): need = max(need, 12)
    if p.kind == 'salu' and 'm0' in pw and c.kind == 'dma': need = max(need, 1)
    if p.kind == 'vst' and set(p.data) & set(c.wr) and len(p.data) >= 3:
        need = max(need, 2)
    if p.kind == 'ldsw' and set(p.rd) & set(c.wr) and c.is_valu():
        need = max(need, 1)
    return need

def pad_hazards(trace):
    added = 0
    real = [x for x in trace if x.kind != 'label']
    for j, c in enumerate(real):
        if c.kind in ('wait', 'nop', 'swait'): continue
        dist = prefix_states(c)
        i = j - 1
        while i >= 0 and dist < 13:
            p = real[i]
            nd = need_between(p, c) if p.kind not in ('wait', 'nop', 'swait') else 0
            if nd > dist:
                c.pre_nop += nd - dist
                added += nd - dist
                dist = nd
            dist += states_of(p) + (prefix_states(p) if p.kind != 'wait' else 0)
            i -= 1
    return added

def emit(block):
    out = []
    for ins in block:
        if ins.kind == 'label':
            out.append(ins.text if ins.text.endswith(':') else '    ' + ins.text); continue
        if ins.kind == 'wait':
            w = []
            if ins.r_vm is not None: w.append(f'vmcnt({ins.r_vm})')
            if ins.r_lgkm is not None: w.append(f'lgkmcnt({ins.r_lgkm})')
            if w: out.append('    s_waitcnt ' + ' '.join(w))
            continue
        w = []
        if ins.pre_vm is not None: w.append(f'vmcnt({ins.pre_vm})')
        if ins.pre_lgkm is not None: w.append(f'lgkmcnt({ins.pre_lgkm})')
        if w: out.append('    s_waitcnt ' + ' '.join(w) + '   ; auto')
        n = ins.pre_nop
        while n > 0:
            k = min(n, 16)
            out.append(f'    s_nop {k-1}')
            n -= k
        out.append('    ' + ins.text + (f'   ; {ins.comment}' if ins.comment else ''))
    return out
```

```python
from asmlib import *
import math, struct

KN = "standalone__mha_softmax__near_ridge_kernel"
HEAD_Q = 736 * 256
HEAD_K = 512 * 256
KV_BYTES = 256 * HEAD_K
KRING = 0
VRING = 49152
QST = 98304
LDS_BYTES = 163840
def f2u(x): return struct.unpack('<I', struct.pack('<f', x))[0]
CSCALE = f2u((128 ** -0.5) * math.log2(math.e))
THRESH = f2u(2.0 ** 60)

sW = 's3'
sQp = (4, 5); sOp = (6, 7)
SRD_K = 's[8:11]'; SRD_V = 's[12:15]'; SRD_Q = 's[16:19]'; SRD_O = 's[20:23]'
sC = 's24'
sRing = ['s25', 's26', 's27']
sOoff = ['s28', 's29', 's30', 's31']
sWK = 's32'; sWV = 's33'; sStage = 's34'
sKcur = 's35'; sKnext = 's36'; sVx = 's37'
sT0 = 's38'; sT1 = 's39'
sU = 's40'; sFlag = 's41'
sUK = ['s42', 's43', 's44', 's45']
sUQ = ['s46', 's47', 's48', 's49']
sUN = ['s50', 's51', 's52', 's53']
sT2 = 's54'; sT3 = 's55'; sT4 = 's56'; sCnt = 's57'
sStg = ['s58', 's59', 's60', 's61']
vLane = 'v1'
vDK = ['v2', 'v3', 'v4', 'v5']
vKb = ['v7', 'v8']; vVb = 'v9'
vKa = ['v10', 'v11']; vVa = 'v12'
vQa = ['v13', 'v14']
vOw = ['v15', 'v16', 'v17', 'v18']
vOr = ['v19', 'v20']
vSt = 'v21'
vMc = ['v22', 'v23']; vL = ['v24', 'v25']; vRi = ['v26', 'v27']
vT = ['v%d' % i for i in range(28, 44)]
def SB(b, qb): return 64 + 32 * b + 16 * qb
def OB(qb, t): return 128 + 64 * qb + 16 * t
def vr(lo, n): return f'v[{lo}:{lo+n-1}]'
def ar(lo, n): return f'a[{lo}:{lo+n-1}]'
def Qf(qb, ks): return ar(32 * qb + 4 * ks, 4)
def Kf(ks): return ar(64 + 4 * ks, 4)
def Vf_lo(par, kk, t): return 96 + 32 * par + 16 * kk + 4 * t
def Ost(n): return ar(160 + 4 * n, 4)

def header(grid=256):
    return f"""; Fused attention forward (bf16, D=128, Sq=736, Sk=512, B*H=256) for gfx950.
; @launch grid=({grid},1,1) block=(256,1,1) lds={LDS_BYTES}
.amdgcn_target "amdgcn-amd-amdhsa--gfx950"
.text
.globl {KN}
.p2align 8
.type {KN},@function
{KN}:"""

def footer():
    return f""".section .rodata,"a"
.p2align 6
.amdhsa_kernel {KN}
  .amdhsa_next_free_vgpr 512
  .amdhsa_next_free_sgpr 102
  .amdhsa_accum_offset 256
  .amdhsa_group_segment_fixed_size 0
  .amdhsa_kernarg_size 48
  .amdhsa_user_sgpr_count 2
  .amdhsa_user_sgpr_kernarg_segment_ptr 1
  .amdhsa_system_sgpr_workgroup_id_x 1
.end_amdhsa_kernel
"""

def setup_scalar():
    L = []
    a = lambda t: L.append(I(t))
    a('s_cmp_ge_u32 s2, 256')
    a('s_cbranch_scc1 L_exit')
    a('s_load_dwordx2 s[4:5], s[0:1], 0')
    a('s_load_dwordx2 s[8:9], s[0:1], 8')
    a('s_load_dwordx2 s[12:13], s[0:1], 16')
    a('s_load_dwordx2 s[6:7], s[0:1], 24')
    a('v_lshrrev_b32 v28, 6, v0')
    a(f'v_and_b32 {vLane}, 63, v0')
    a(f'v_readfirstlane_b32 {sW}, v28')
    a(f's_and_b32 {sT0}, s2, 7')
    a(f's_lshl_b32 {sT0}, {sT0}, 5')
    a(f's_lshr_b32 {sT1}, s2, 3')
    for u in range(3):
        a(f's_add_u32 {sT2}, {sT1}, {32*u}')
        a(f's_mul_i32 {sT3}, {sT2}, 171')
        a(f's_lshr_b32 {sT3}, {sT3}, 9')
        a(f's_mul_i32 {sT4}, {sT3}, 3')
        a(f's_sub_u32 {sT4}, {sT2}, {sT4}')
        a(f's_add_u32 {sT3}, {sT3}, {sT0}')
        a(f's_lshl_b32 {sUK[u]}, {sT3}, 17')
        a(f's_mul_i32 {sUQ[u]}, {sT3}, {HEAD_Q}')
        a(f's_lshl_b32 {sT2}, {sT4}, 16')
        a(f's_add_u32 {sUQ[u]}, {sUQ[u]}, {sT2}')
        a(f's_sub_u32 {sUN[u]}, {HEAD_Q}, {sT2}')
        a(f's_min_u32 {sUN[u]}, {sUN[u]}, 0x10000')
    a(f's_mov_b32 {sUK[3]}, 0x40000000')
    a(f's_mov_b32 {sUQ[3]}, 0')
    a(f's_mov_b32 {sUN[3]}, 0')
    a(f's_mov_b32 s10, {KV_BYTES}')
    a('s_mov_b32 s11, 0x20000')
    a(f's_mov_b32 s14, {KV_BYTES}')
    a('s_mov_b32 s15, 0x20000')
    a('s_mov_b32 s19, 0x20000')
    a('s_mov_b32 s23, 0x20000')
    a(f's_mov_b32 {sC}, {CSCALE:#x}')
    a(f's_lshl_b32 {sWK}, {sW}, 12')
    a(f's_add_u32 {sWV}, {sWK}, {VRING}')
    a(f's_lshl_b32 {sOoff[0]}, {sW}, 14')
    for g in range(1, 4):
        a(f's_add_u32 {sOoff[g]}, {sOoff[0]}, {4096*g}')
    a(f's_add_u32 {sStage}, {sOoff[0]}, {QST}')
    for g in range(4):
        a(f's_add_u32 {sStg[g]}, {sStage}, {4096*g}')
    a(f's_mov_b32 {sFlag}, 0')
    return L

def setup_dma_voff():
    L = []
    a = lambda t: L.append(I(t))
    t0, t1 = vT[0], vT[1]
    a(f'v_bfe_u32 {t0}, {vLane}, 2, 2')
    a(f'v_lshlrev_b32 {t0}, 8, {t0}')
    a(f'v_lshrrev_b32 {t1}, 4, {vLane}')
    a(f'v_lshl_or_b32 {t0}, {t1}, 6, {t0}')
    a(f'v_and_b32 {t1}, 3, {vLane}')
    a(f'v_lshl_or_b32 {vDK[0]}, {t1}, 4, {t0}')
    for n in range(1, 4):
        a(f'v_xor_b32 {vDK[n]}, {16*n}, {vDK[0]}')
    return L

def setup_vec():
    L = []
    a = lambda t: L.append(I(t))
    t0, t1, t2, h = vT[0], vT[1], vT[2], vT[3]
    a(f'v_lshrrev_b32 {h}, 5, {vLane}')
    a(f'v_bfe_u32 {t0}, {vLane}, 2, 3')
    a(f'v_and_b32 {t1}, 3, {t0}')
    a(f'v_xor_b32 {t1}, {t1}, {h}')
    a(f'v_lshlrev_b32 {t1}, 4, {t1}')
    a(f'v_lshl_or_b32 {t1}, {t0}, 10, {t1}')
    a(f'v_and_b32 {t2}, 3, {vLane}')
    a(f'v_lshl_or_b32 {vKb[0]}, {t2}, 6, {t1}')
    a(f'v_xor_b32 {vKb[1]}, 32, {vKb[0]}')
    a(f'v_add_u32 {vQa[0]}, {sStage}, {vKb[0]}')
    a(f'v_add_u32 {vQa[1]}, {sStage}, {vKb[1]}')
    a(f'v_bfe_u32 {t0}, {vLane}, 2, 2')
    a(f'v_lshlrev_b32 {t0}, 6, {t0}')
    a(f'v_lshl_or_b32 {t0}, {h}, 10, {t0}')
    a(f'v_and_b32 {t1}, 1, {vLane}')
    a(f'v_lshl_or_b32 {t0}, {t1}, 5, {t0}')
    a(f'v_and_b32 {t1}, 16, {vLane}')
    a(f'v_or_b32 {t0}, {t0}, {t1}')
    a(f'v_bfe_u32 {t1}, {vLane}, 1, 1')
    a(f'v_lshl_or_b32 {t0}, {t1}, 3, {t0}')
    a(f'v_add_u32 {vVb}, {VRING}, {t0}')
    a(f'v_and_b32 {t0}, 7, {vLane}')
    a(f'v_lshlrev_b32 {t1}, 1, {h}')
    a(f'v_xor_b32 {t0}, {t0}, {t1}')
    a(f'v_lshlrev_b32 {t0}, 4, {t0}')
    a(f'v_and_b32 {t1}, 31, {vLane}')
    a(f'v_lshl_or_b32 {t0}, {t1}, 8, {t0}')
    a(f'v_add_u32 {vOw[0]}, {sStage}, {t0}')
    for j, x in enumerate((16, 64, 80)):
        a(f'v_xor_b32 {vOw[j+1]}, {x}, {vOw[0]}')
    a(f'v_lshrrev_b32 {t0}, 4, {vLane}')
    a(f'v_and_b32 {t1}, 15, {vLane}')
    a(f'v_xor_b32 {t1}, {t1}, {t0}')
    a(f'v_lshlrev_b32 {t1}, 4, {t1}')
    a(f'v_lshl_or_b32 {t1}, {t0}, 8, {t1}')
    a(f'v_add_u32 {vOr[0]}, {sStage}, {t1}')
    a(f'v_xor_b32 {vOr[1]}, 64, {vOr[0]}')
    a(f'v_lshlrev_b32 {vSt}, 4, {vLane}')
    return L

def set_srd(which, sOff, sNum):
    b = 16 if which == 'Q' else 20
    p = sQp if which == 'Q' else sOp
    return [I(f's_add_u32 s{b}, s{p[0]}, {sOff}'), I(f's_addc_u32 s{b+1}, s{p[1]}, 0'), I(f's_mov_b32 s{b+2}, {sNum}')]

def q_dma(p, tag=None):
    return I(f'buffer_load_dwordx4 {vDK[p%4]}, {SRD_Q}, {sOoff[p//4]} offen offset:{(p%4)*1024} lds', tag=tag)
def q_read(qb, ks, tag=None):
    return I(f'ds_read_b128 {Qf(qb, ks)}, {vQa[ks&1]} offset:{qb*8192 + (ks>>1)*256}', tag=tag)
def o_write(qb, t, e, tag=None):
    lo = OB(qb, t) + 4 * e
    return I(f'ds_write_b128 {vOw[2*(t&1)+e]}, {vr(lo,4)} offset:{qb*8192 + (t>>1)*128}', tag=tag)
def o_read(n, tag=None):
    return I(f'ds_read_b128 {Ost(n)}, {vOr[n&1]} offset:{n*1024}', tag=tag)
ST_MOD = ''
def o_store(n, tag=None):
    return I(f'buffer_store_dwordx4 {Ost(n)}, {vSt}, {SRD_O}, {sOoff[n//4]} offen offset:{(n%4)*1024}{ST_MOD}', tag=tag)
def mfma(d, a, b, c):
    return I(f'v_mfma_f32_32x32x16_bf16 {d}, {a}, {b}, {c}')

def max_tree(dst, base, tmp):
    L = []
    L.append(I(f'v_max3_f32 {dst}, v{base}, v{base+1}, v{base+2}'))
    L.append(I(f'v_max3_f32 {tmp}, v{base+3}, v{base+4}, v{base+5}'))
    L.append(I(f'v_max3_f32 {dst}, {dst}, v{base+6}, v{base+7}'))
    L.append(I(f'v_max3_f32 {tmp}, {tmp}, v{base+8}, v{base+9}'))
    L.append(I(f'v_max3_f32 {dst}, {dst}, v{base+10}, v{base+11}'))
    L.append(I(f'v_max3_f32 {tmp}, {tmp}, v{base+12}, v{base+13}'))
    L.append(I(f'v_max3_f32 {dst}, {dst}, v{base+14}, v{base+15}'))
    L.append(I(f'v_max_f32 {dst}, {dst}, {tmp}'))
    L.append(I(f'v_mov_b32 {tmp}, {dst}'))
    L.append(I(f'v_permlane32_swap_b32 {dst}, {tmp}'))
    L.append(I(f'v_max_f32 {dst}, {dst}, {tmp}'))
    return L

def slow_unit(lbl):
    pre = []; a = lambda t: pre.append(I(t) if isinstance(t, str) else t)
    vM = [vT[4], vT[5]]; vAl = vT[6]; tA, tB = vT[7], vT[8]; vVs = vT[9]
    a('s_waitcnt vmcnt(0) lgkmcnt(0)')
    for p in range(16):
        if p % 4 == 0: a(f's_mov_b32 m0, {sStg[p//4]}')
        a(q_dma(p))
    a(f'v_subrev_u32 {vVs}, {VRING - 8192}, {vVb}')
    a(f'v_add_u32 {vVs}, {sStage}, {vVs}')
    for r in range(128, 256): a(f'v_mov_b32 v{r}, 0')
    for qb in range(2):
        a(f'v_mov_b32 {vM[qb]}, 0xff800000')
        a(f'v_mov_b32 {vL[qb]}, 0')
    a('s_waitcnt vmcnt(0)')
    for qb in range(2):
        for ks in range(8): a(q_read(qb, ks))
    a(f's_mov_b32 {sCnt}, 16')
    loop = []; a = lambda t: loop.append(I(t) if isinstance(t, str) else t)
    a(f'{lbl}:')
    a('s_waitcnt lgkmcnt(0)')
    a(f's_add_u32 {sT3}, {sT4}, 4096')
    for p in range(8):
        if p % 4 == 0: a(f's_mov_b32 m0, {sStg[p//4]}')
        a(f'buffer_load_dwordx4 {vDK[p%4]}, {SRD_K}, {sT4 if p < 4 else sT3} offen offset:{(p%4)*1024} lds')
    for p in range(8):
        if p % 4 == 0: a(f's_mov_b32 m0, {sStg[2 + p//4]}')
        a(f'buffer_load_dwordx4 {vDK[0]}, {SRD_V}, {sT4 if p < 4 else sT3} offen offset:{(p%4)*1024} lds')
    a(f's_add_u32 {sT4}, {sT4}, 8192')
    a('s_waitcnt vmcnt(0)')
    for ks in range(8):
        a(f'ds_read_b128 {Kf(ks)}, {vQa[ks&1]} offset:{(ks>>1)*256}')
    for kk in range(2):
        for t in range(4):
            for ap in range(2):
                lo = Vf_lo(0, kk, t) + 2 * ap
                a(f'ds_read_b64_tr_b16 {ar(lo,2)}, {vVs} offset:{(4*kk+2*ap)*1024 + t*256}')
    for qb in range(2):
        for ks in range(8):
            d = vr(SB(0, qb), 16)
            a(mfma(d, Kf(ks), Qf(qb, ks), '0' if ks == 0 else d))
    for qb in range(2):
        s = SB(0, qb)
        for x in max_tree(tA, s, tB): a(x)
        a(f'v_max_f32 {tA}, {tA}, {vM[qb]}')
        a(f'v_sub_f32 {tB}, {vM[qb]}, {tA}')
        a(f'v_mul_f32 {tB}, {sC}, {tB}')
        a(f'v_exp_f32 {vAl}, {tB}')
        a(f'v_mov_b32 {vM[qb]}, {tA}')
        a(f'v_mul_f32 {vMc[qb]}, {sC}, {tA}')
        a(f'v_mul_f32 {vL[qb]}, {vL[qb]}, {vAl}')
        for r in range(64):
            a(f'v_mul_f32 v{OB(qb,0)+r}, v{OB(qb,0)+r}, {vAl}')
        for r in range(16): a(f'v_fma_f32 v{s+r}, v{s+r}, {sC}, -{vMc[qb]}')
        for r in range(16): a(f'v_exp_f32 v{s+r}, v{s+r}')
        for r in range(16): a(f'v_add_f32 {vL[qb]}, {vL[qb]}, v{s+r}')
        for g in range(2):
            for j in range(4):
                a(f'v_cvt_pk_bf16_f32 v{s+8*g+j}, v{s+8*g+2*j}, v{s+8*g+2*j+1}')
    for qb in range(2):
        for t in range(4):
            for kk in range(2):
                d = vr(OB(qb, t), 16)
                a(mfma(d, ar(Vf_lo(0, kk, t), 4), vr(SB(0, qb) + 8 * kk, 4), d))
    a(f's_sub_u32 {sCnt}, {sCnt}, 1')
    a(f's_cmp_lg_u32 {sCnt}, 0')
    a(f's_cbranch_scc1 {lbl}')
    post = []; a = lambda t: post.append(I(t) if isinstance(t, str) else t)
    for qb in range(2):
        a(f'v_mov_b32 {tA}, {vL[qb]}')
        a(f'v_permlane32_swap_b32 {vL[qb]}, {tA}')
        a(f'v_add_f32 {tA}, {vL[qb]}, {tA}')
        a(f'v_rcp_f32 {vRi[qb]}, {tA}')
        for t in range(4):
            o = OB(qb, t)
            for r in range(16): a(f'v_mul_f32 v{o+r}, v{o+r}, {vRi[qb]}')
            for j in range(8): a(f'v_cvt_pk_bf16_f32 v{o+j}, v{o+2*j}, v{o+2*j+1}')
            a(o_write(qb, t, 0)); a(o_write(qb, t, 1))
    for n in range(16): a(o_read(n))
    for n in range(16): a(o_store(n))
    return pre, loop, post
```

```python
from gen_common import *
import sys
A = setup_scalar() + setup_dma_voff() + [I('s_waitcnt lgkmcnt(0)')] + setup_vec()
A.append(I(f's_mov_b32 {sU}, 0'))
B = [I('L_unit:')]
B += set_srd('Q', sUQ[0], sUN[0]) + set_srd('O', sUQ[0], sUN[0])
B.append(I(f's_mov_b32 {sT4}, {sUK[0]}'))
pre, loop, post = slow_unit('L_sl')
C = []
for j in range(3):
    C += [I(f's_mov_b32 {sUK[j]}, {sUK[j+1]}'), I(f's_mov_b32 {sUQ[j]}, {sUQ[j+1]}'), I(f's_mov_b32 {sUN[j]}, {sUN[j+1]}')]
C += [I(f's_add_u32 {sU}, {sU}, 1'), I(f's_cmp_lt_u32 {sU}, 3'), I('s_cbranch_scc1 L_unit'), I('L_exit:'), I('s_endpgm')]
trace = A + B + pre + loop + loop + post + C + B + pre + loop
resolve_waits(trace)
while pad_hazards(trace): pass
out = [header()] + emit(A + B + pre + loop + post + C) + [footer()]
open(sys.argv[1], 'w').write('\n'.join(out))
```
